```python
import torch

def _softmax(x, axis=-1):
    return torch.softmax(x, dim=axis)
def _gelu(x):
    return torch.nn.functional.gelu(x, approximate="tanh")
def _silu(x):
    return torch.nn.functional.silu(x)
def _sigmoid(x):
    return torch.sigmoid(x)
def _layernorm(x, axis=-1, eps=1e-5):
    m = x.mean(dim=axis, keepdim=True)
    v = x.var(dim=axis, keepdim=True, unbiased=False)
    return (x - m) / torch.sqrt(v + eps)
def _scatter_add(tgt, idx, src, axis=0):
    return tgt.clone().index_add_(axis, idx, src)
def _segment_sum(src, seg, n):
    out = torch.zeros((n,) + src.shape[1:], dtype=src.dtype)
    return out.index_add_(0, seg, src)
def _pad(x, pw):
    flat = tuple(v for pair in reversed(pw) for v in pair)
    return torch.nn.functional.pad(x, flat)

kernel_name = 'gated_mix__sliding_block_cached__glu_gated_geglu__decode'

def setup_inputs():

    _w = (lambda a: (lambda t: t.to(torch.bfloat16) if t.is_floating_point() else t)(torch.as_tensor(a)))
    def _A_setup():
        B, Sq, D = 4, 1, 640
        Hq, Hkv, Sk, Dh = 32, 32, 4096, 128
        assert Hq % Hkv == 0, (Hq, Hkv)
        return {
            "x": _w((lambda *s: torch.randn(*s, dtype=torch.bfloat16) * 0.05)(B, Sq, D)),
            "k_cache": _w((lambda *s: torch.randn(*s, dtype=torch.bfloat16) * 6.4)(B, Hkv, Sk, Dh)),
            "v_cache": _w((lambda *s: torch.randn(*s, dtype=torch.bfloat16) * 0.05)(B, Hkv, Sk, Dh)),
            "wq": _w((lambda *s: torch.randn(*s, dtype=torch.bfloat16) * 6.4)(D, Hq * Dh) * (D ** -0.5)),
            "wo": _w((lambda *s: torch.randn(*s, dtype=torch.bfloat16) * 0.05)(Hq * Dh, D) * ((Hq * Dh) ** -0.5)),
        }
    _A_in = _A_setup()

    def _B_setup():
        B, S, Dm, Df = 4, 1, 640, 1728
        return {
            "x": _w((lambda *s: torch.randn(*s, dtype=torch.bfloat16) * 0.05)(B, S, Dm)),
            "w_gate": _w((lambda *s: torch.randn(*s, dtype=torch.bfloat16) * 0.8)(Dm, Df) * (Dm ** -0.5)),
            "w_up": _w((lambda *s: torch.randn(*s, dtype=torch.bfloat16) * 0.8)(Dm, Df) * (Dm ** -0.5)),
            "w_down": _w((lambda *s: torch.randn(*s, dtype=torch.bfloat16) * 0.8)(Df, Dm) * (Df ** -0.5)),
        }
    _B_in = _B_setup()

    return {
        "A_x": _A_in["x"],
        "A_k_cache": _A_in["k_cache"],
        "A_v_cache": _A_in["v_cache"],
        "A_wq": _A_in["wq"],
        "A_wo": _A_in["wo"],
        "B_x": _B_in["x"],
        "B_w_gate": _B_in["w_gate"],
        "B_w_up": _B_in["w_up"],
        "B_w_down": _B_in["w_down"],
        "gate_w": _w((lambda *s: torch.randn(*s, dtype=torch.bfloat16) * 0.05)(640) * 16.0),
    }

def reference(A_x, A_k_cache, A_v_cache, A_wq, A_wo, B_x, B_w_gate, B_w_up, B_w_down, gate_w):
    def _A_ref(x, k_cache, v_cache, wq, wo):
        B, Sq, D = x.shape
        Hq, Dh = 32, 128
        Hkv, Sk = k_cache.shape[1], k_cache.shape[2]
        W = min(4096, max(256, Sk // 4))
        rep = Hq // Hkv
        q = (lambda x, *d: x.permute(*d))((x @ wq).reshape(B, Sq, Hq, Dh), 0, 2, 1, 3)
        k = (lambda x, n, axis: torch.repeat_interleave(x, n, dim=axis))(k_cache[:, :, Sk - W:, :], rep, axis=1)
        v = (lambda x, n, axis: torch.repeat_interleave(x, n, dim=axis))(v_cache[:, :, Sk - W:, :], rep, axis=1)
        scores = torch.einsum("bhqd,bhkd->bhqk", q, k) * (Dh ** -0.5)
        p = _softmax(scores, axis=-1)
        o = torch.einsum("bhqk,bhkd->bhqd", p, v)
        return (lambda x, *d: x.permute(*d))(o, 0, 2, 1, 3).reshape(B, Sq, Hq * Dh) @ wo

    def _B_ref(x, w_gate, w_up, w_down):
        g = torch.einsum("bsd,df->bsf", x, w_gate)
        u = torch.einsum("bsd,df->bsf", x, w_up)
        h = _gelu(g) * u
        return torch.einsum("bsf,fd->bsd", h, w_down)

    x = A_x
    g = _sigmoid((x * gate_w).sum(-1, keepdims=True))
    a = _A_ref(x, A_k_cache, A_v_cache, A_wq, A_wo)
    b = _B_ref(x, B_w_gate, B_w_up, B_w_down)
    return g * a + (1 - g) * b
```

```python
import re

def _regs(tok):
    tok = tok.strip()
    neg = tok.startswith('-')
    if neg: tok = tok[1:]
    m = re.fullmatch(r'abs\((.*)\)', tok)
    if m: tok = m.group(1)
    m = re.fullmatch(r'\|(.*)\|', tok)
    if m: tok = m.group(1)
    m = re.fullmatch(r'([vsa])(\d+)', tok)
    if m: return [(m.group(1), int(m.group(2)))]
    m = re.fullmatch(r'([vsa])\[(\d+):(\d+)\]', tok)
    if m: return [(m.group(1), i) for i in range(int(m.group(2)), int(m.group(3)) + 1)]
    if tok == 'vcc': return [('vcc', 0)]
    if tok in ('vcc_lo', 'vcc_hi'): return [('vcc', 0)]
    if tok == 'exec': return [('exec', 0)]
    if tok == 'm0': return [('m0', 0)]
    return []

TRANS = ('v_exp_f32', 'v_log_f32', 'v_rcp_f32', 'v_rsq_f32', 'v_sqrt_f32', 'v_sin_f32', 'v_cos_f32')

class Ins:
    __slots__ = ('text', 'mn', 'kind', 'w', 'r', 'states', 'dpp', 'passes', 'srcc', 'wide_store_data', 'lanesel')

def parse(text):
    t = text.split(';')[0].strip()
    i = Ins(); i.text = text; i.w = []; i.r = []; i.states = 1; i.dpp = False; i.passes = 0; i.srcc = []; i.wide_store_data = []; i.lanesel = []
    parts = t.split(None, 1)
    mn = parts[0]; i.mn = mn
    rest = parts[1] if len(parts) > 1 else ''
    ops = []; depth = 0; cur = ''
    for ch in rest:
        if ch == '[': depth += 1
        if ch == ']': depth -= 1
        if ch == ',' and depth == 0:
            ops.append(cur.strip()); cur = ''
        else: cur += ch
    if cur.strip(): ops.append(cur.strip())
    mods = ''
    if ops:
        lp = ops[-1].split(None, 1)
        ops[-1] = lp[0]
        if len(lp) > 1: mods = lp[1]
    R = [_regs(o) for o in ops]
    if mn == 's_nop':
        i.kind = 'nop'; i.states = int(ops[0], 0) + 1
    elif mn.startswith('v_mfma'):
        i.kind = 'mfma'; i.w = R[0]; i.r = R[1] + R[2] + R[3]; i.srcc = R[3]
        i.passes = 8 if '32x32' in mn else 4
    elif mn.startswith('v_cmp'):
        i.kind = 'valu'; i.w = R[0]; i.r = sum(R[1:], [])
    elif mn.startswith('v_permlane') and 'swap' in mn:
        i.kind = 'permlane'; i.w = R[0] + R[1]; i.r = R[0] + R[1]
    elif mn in ('v_readfirstlane_b32', 'v_readlane_b32'):
        i.kind = 'readlane'; i.w = R[0]; i.r = sum(R[1:], [])
        if mn == 'v_readlane_b32': i.lanesel = R[2]
    elif mn.startswith('v_'):
        i.kind = 'valu'; i.w = list(R[0]); i.r = sum(R[1:], [])
        if mn.startswith(('v_add_co', 'v_sub_co', 'v_addc_co', 'v_subb_co')):
            i.w += R[1]; i.r = sum(R[2:], [])
        if mn.startswith(('v_fmac', 'v_dot2c', 'v_pk_fmac')): i.r += R[0]
        if mn.startswith('v_cndmask') and len(ops) == 3: i.r.append(('vcc', 0))
        if '_dpp' in mn or 'row_' in mods or 'quad_perm' in mods:
            i.dpp = True
            i.r += R[0]
        if mn.split('_e')[0] in TRANS or mn in TRANS: i.kind = 'trans'
    elif mn.startswith(('buffer_load', 'global_load')):
        i.kind = 'vmem'
        if 'lds' in mods.split() or 'load_lds' in mn:
            i.r = sum(R, []) + [('m0', 0)]
        else:
            i.w = R[0]; i.r = sum(R[1:], [])
    elif mn.startswith(('buffer_store', 'global_store', 'buffer_atomic', 'global_atomic')):
        i.kind = 'vmem'; i.r = sum(R, [])
        if mn.startswith('buffer_atomic') and 'sc0' in mods.split(): i.w = R[0]
        if 'x4' in mn or 'x3' in mn:
            i.wide_store_data = R[0] if mn.startswith('buffer') else R[1]
    elif mn.startswith('ds_'):
        i.kind = 'ds'
        if mn.startswith(('ds_read', 'ds_bpermute', 'ds_permute', 'ds_swizzle')) or '_rtn' in mn:
            i.w = R[0]; i.r = sum(R[1:], [])
        else: i.r = sum(R, [])
    elif mn.startswith('s_'):
        i.kind = 'salu'
        if mn.startswith(('s_cmp', 's_cbranch', 's_branch', 's_waitcnt', 's_barrier', 's_sleep', 's_setprio', 's_endpgm', 's_bitcmp')):
            i.r = sum(R, [])
        else:
            i.w = R[0] if R else []; i.r = sum(R[1:], [])
            if 'saveexec' in mn: i.w = i.w + [('exec', 0)]
    else:
        raise ValueError('unknown instr ' + text)
    return i

def need(prod, cons):
    n = 0
    pw = set(prod.w); cr = set(cons.r); cw = set(cons.w)
    valu_like = prod.kind in ('valu', 'trans', 'permlane', 'readlane')
    pv = {x for x in pw if x[0] in 'va'}
    ps = {x for x in pw if x[0] in ('s', 'vcc')}
    if valu_like:
        if cons.dpp and pv & cr: n = max(n, 2)
        if cons.kind == 'permlane' and pv & cr: n = max(n, 2)
        if cons.kind == 'mfma' and pv & cr: n = max(n, 2)
        if cons.kind == 'readlane' and pv & cr: n = max(n, 1)
        if prod.kind == 'trans' and cons.kind in ('valu', 'permlane', 'readlane', 'mfma', 'trans') and pv & cr: n = max(n, 1)
        if ps:
            if cons.kind in ('valu', 'trans', 'permlane', 'mfma') and ps & cr: n = max(n, 2)
            if cons.kind == 'readlane' and ps & set(cons.lanesel): n = max(n, 4)
            if cons.kind == 'vmem' and ps & cr: n = max(n, 5)
            if cons.kind == 'salu' and ps & cr: n = max(n, 2)
            if cons.kind == 'salu' and cons.mn.startswith('s_cbranch_vcc') and ('vcc', 0) in ps: n = max(n, 5)
        if prod.mn.startswith('v_cvt_pk') and cons.kind in ('valu','trans') and pv & cr: n = max(n, 0)
    if prod.kind == 'mfma':
        p = prod.passes
        d = pw
        if cons.kind == 'mfma':
            ab = set(cons.r) - set(cons.srcc)
            if d & ab: n = max(n, {4: 8, 8: 12}[p])
            c = set(cons.srcc)
            if d & c:
                if c == d and cons.passes == p and cons.mn == prod.mn: pass
                else: n = max(n, {4: 8, 8: 12}[p])
            elif d & cw: n = max(n, {4: 8, 8: 12}[p])
        elif cons.kind != 'nop' and (d & cr or d & cw): n = max(n, {4: 8, 8: 12}[p])
        if cons.kind in ('valu', 'trans', 'permlane') and set(prod.srcc) & cw: n = max(n, {4: 3, 8: 7}[p])
    if prod.wide_store_data and cons.kind != 'nop' and set(prod.wide_store_data) & cw: n = max(n, 2)
    if prod.kind == 'salu' and ('m0', 0) in pw and ('m0', 0) in cr and cons.kind in ('vmem', 'ds'): n = max(n, 1)
    return n

class Emitter:
    def __init__(self):
        self.lines = []
        self.hist = []
        self.nlabel = 0
    def raw(self, s):
        self.lines.append(s)
    def label(self, name):
        self.lines.append(name + ':')
    def newlabel(self, p='L'):
        self.nlabel += 1
        return f'{p}_{self.nlabel}'
    def c(self, s):
        self.lines.append('  ; ' + s)
    def __call__(self, text):
        ins = parse(text)
        dist = 0; req = 0
        for p in reversed(self.hist[-24:]):
            nd = need(p, ins)
            if nd - dist > req: req = nd - dist
            dist += p.states
            if dist > 20: break
        while req > 0:
            k = min(req, 16)
            nop = parse(f's_nop {k-1}')
            self.lines.append(f'  s_nop {k-1}')
            self.hist.append(nop)
            req -= k
        self.lines.append('  ' + text)
        self.hist.append(ins)
    def fence(self, n=12):
        self(f's_nop {n-1}')
    def text(self):
        return '\n'.join(self.lines) + '\n'
```

```python
import sys
from asmgen import Emitter

NAME = "gated_mix__sliding_block_cached__glu_gated_geglu__decode_kernel"
HEADER = open('gated_mix__sliding_block_cached__glu_gated_geglu__decode.s.ref').read().split('; Override launch')[0]

S1OUT = 0
FIN = 1 << 20
OX = 5 << 19
OXL = (5 << 19) + (1 << 18)
STATS = 3 << 20
HELLO = (3 << 20) + 4096
WS_USED = 4 << 20
STAMP = 256 << 20
L_C1, L_N, L_Q, L_LOC, L_CSTAT, L_CB, L_CO, L_VI = 0, 4, 8, 12, 16, 20, 24, 28
L_G = 32
L_PW = 36
L_NV = 40
L_GV = 48
L_MW, L_LW = 64, 96
L_BV = 128
L_O = 512
L_P = 1024
L_P2 = 1024 + 16384
L_QB = 1024 + 16384 + 32768
LDS_BYTES = L_QB + 256
NSW = 6
NST = 16 * NSW + 1

DOC = """; ---------------------------------------------------------------------------------------------
;  Hand-offs go through d_ws as 16-byte granules {v0, v1, tag64}; the tag is a per-launch nonce that
; ---------------------------------------------------------------------------------------------"""

def gen(diag=0, ws_win=3, n0=8, lsleep=4, fpos=12, cotrig=6, hc=3, opol=3, scons=1, cwait=0, ramp=0, rampn=2, vwin=16, w2win=0, hr=4, adapt=0, ta=200, tb=29, wbig=5, cstep=3, c0=6, abl=0, oxtrig=8, b5=1, cosl=1, w2co=0, wdco=0, pw=0, sp=0, ap=3, sq=0, ap2=0, burst=0, mid=2, pipe=0, pdl=2, clean=0):
    e0 = Emitter()
    class W:
        def __call__(self, t):
            if (abl & 1) and t.startswith("buffer_store") and "s[44:47]" in t: return
            if (abl & 256) and t.startswith("buffer_load") and ("s[56:59]" in t or "s[64:67]" in t): return
            if (abl & 512) and (t.startswith("v_mfma") or "dpp" in t or t.startswith("v_exp") or t.startswith("v_perm")): return
            if (abl & 16384) and t.startswith("buffer_store_dwordx4 v[72:75], v97,"): t = t.replace(" sc1", "")
            if (abl & 32768) and t.startswith("buffer_store_short"): return
            if (abl & 128) and t.startswith("buffer_store_dwordx4 v[24:27]"): return
            e0(t)
        def __getattr__(self, n): return getattr(e0, n)
    e = W()
    e.raw(HEADER.rstrip())
    e.raw(f"; @launch grid=(256,1,1) block=(1024,1,1) lds={LDS_BYTES}")
    e.raw(DOC)
    e.raw('.amdgcn_target "amdgcn-amd-amdhsa--gfx950"')
    e.raw(".text")
    e.raw(f".globl {NAME}")
    e.raw(".p2align 8")
    e.raw(f".type {NAME},@function")
    e.label(NAME)
    END = "L_fin" if diag else "L_end"
    DPPM = "row_mask:0xf bank_mask:0xf"
    PG = 120

    def st(k):
        if diag: e(f"s_memrealtime s[{80+2*k}:{81+2*k}]")
    def srd(d, p, size):
        e(f"s_mov_b32 s{d}, s{p}")
        e(f"s_and_b32 s{d+1}, s{p+1}, 0xffff")
        e(f"s_mov_b32 s{d+2}, {size}")
        e(f"s_mov_b32 s{d+3}, 0x20000")
    stubs = []
    hook = [False]
    def lds_wait(off, val, tmpv, zv=3, sl=1):
        L = e.newlabel('LW'); D = e.newlabel('LWD'); R_ = e.newlabel('LR')
        e("s_mov_b32 s42, 0x40000")
        e.label(L)
        e(f"ds_read_b32 v{tmpv}, v{zv} offset:{off}")
        e("s_waitcnt lgkmcnt(0)")
        e(f"v_readfirstlane_b32 s43, v{tmpv}")
        e(f"s_cmp_lt_u32 s43, {val}")
        e(f"s_cbranch_scc1 {R_}")
        e.label(D)
        stubs.append((R_, L, D, sl, 0x40000 - 300, hook[0]))
    def lds_signal(off, onev, zv=3, add=True):
        e("s_mov_b64 exec, 1")
        e(f"v_mov_b32 v{onev}, 1")
        if add: e(f"ds_add_u32 v{zv}, v{onev} offset:{off}")
        else: e(f"ds_write_b32 v{zv}, v{onev} offset:{off}")
        e("s_mov_b64 exec, -1")
    def gather(loads, bases, masks=None, after_first=None, nafter=0, PM=92):
        L = e.newlabel('G'); D = e.newlabel('GD'); C = e.newlabel('GC'); R_ = e.newlabel('GR')
        n = len(loads)
        e("s_mov_b32 s42, 20000")
        for k in range(n):
            if masks and masks[k]:
                e(f"s_mov_b32 s{PM+2*k}, {masks[k][0]:#x}"); e(f"s_mov_b32 s{PM+2*k+1}, {masks[k][1]:#x}")
            else: e(f"s_mov_b64 s[{PM+2*k}:{PM+2*k+1}], -1")
        if after_first:
            for k, t in enumerate(loads):
                e(f"s_mov_b64 exec, s[{PM+2*k}:{PM+2*k+1}]")
                e(t)
            e("s_mov_b64 exec, -1")
            after_first()
            e(f"s_waitcnt vmcnt({nafter})")
            e(f"s_branch {C}")
        e.label(L)
        for k, t in enumerate(loads):
            e(f"s_mov_b64 exec, s[{PM+2*k}:{PM+2*k+1}]")
            e(t)
        e("s_waitcnt vmcnt(0)")
        e.label(C)
        for k, b in enumerate(bases):
            e(f"s_mov_b64 exec, s[{PM+2*k}:{PM+2*k+1}]")
            e(f"v_cmp_ne_u64 s[{PM+2*k}:{PM+2*k+1}], s[76:77], v[{b+2}:{b+3}]")
        e("s_mov_b64 exec, -1")
        if n == 1: e(f"s_cmp_lg_u64 s[{PM}:{PM+1}], 0")
        else:
            e(f"s_or_b64 s[78:79], s[{PM}:{PM+1}], s[{PM+2}:{PM+3}]")
            for k in range(2, n): e(f"s_or_b64 s[78:79], s[78:79], s[{PM+2*k}:{PM+2*k+1}]")
        e(f"s_cbranch_scc1 {R_}")
        e.label(D)
        stubs.append((R_, L, D, 0, 0, False))
    def allreduce(op, r, t, rors=(1, 2, 4, 8)):
        for k in rors:
            e(f"{op}_dpp v{r}, v{r}, v{r} row_ror:{k} {DPPM}")
        e(f"v_mov_b32 v{t}, v{r}")
        e(f"v_permlane16_swap_b32 v{r}, v{t}")
        e(f"{op} v{r}, v{r}, v{t}")
        e(f"v_mov_b32 v{t}, v{r}")
        e(f"v_permlane32_swap_b32 v{r}, v{t}")
        e(f"{op} v{r}, v{r}, v{t}")
    def masksP(m0, t1, t2):
        e(f"v_and_b32 v{t1}, 1, v0")
        e(f"v_lshlrev_b32 v{t1}, 4, v{t1}")
        e(f"v_mov_b32 v{t2}, 0xffff")
        e(f"v_lshlrev_b32 v{t1}, v{t1}, v{t2}")
        e(f"v_bfe_u32 v{t2}, v0, 1, 3")
        for r in range(4):
            e(f"v_cmp_eq_u32 vcc, {r}, v{t2}")
            e(f"v_cndmask_b32 v{m0+r}, 0, v{t1}, vcc")
    def bf16r(r, t):
        e(f"v_cvt_pk_bf16_f32 v{t}, v{r}, v{r}")
        e(f"v_lshlrev_b32 v{r}, 16, v{t}")

    e("s_cmp_ge_u32 s2, 256")
    e("s_cbranch_scc1 L_end")
    st(0)
    e("s_load_dwordx16 s[16:31], s[0:1], 0")
    e("s_load_dwordx8 s[32:39], s[0:1], 64")
    e("s_load_dwordx2 s[40:41], s[0:1], 96")
    e("v_lshrrev_b32 v1, 6, v0")
    e("v_and_b32 v0, 63, v0")
    e("v_readfirstlane_b32 s3, v1")
    e("s_lshr_b32 s8, s2, 3")
    e("s_lshr_b32 s9, s8, 3")
    e(f"s_mul_i32 s4, s9, {hc}")
    e("s_add_u32 s4, s4, s2")
    e("s_and_b32 s4, s4, 7")
    e("s_lshl_b32 s4, s4, 2")
    e("s_add_u32 s4, s4, s9")
    e("s_bfe_u32 s5, s8, 0x20001")
    e("s_and_b32 s6, s8, 7")
    e("s_lshl_b32 s7, s4, 3")
    e("s_add_u32 s7, s7, s6")
    e("s_mul_i32 s10, s4, 3")
    e("s_add_u32 s10, s10, s6")
    e("s_sub_u32 s10, s10, 5")
    e("s_lshl_b32 s10, s10, 1")
    e("s_cmp_ge_u32 s6, 5")
    e("s_cselect_b32 s73, s10, 160")
    if diag:
        e("s_mov_b32 s101, s3")
        for k in range(1, NSW): e(f"s_mov_b64 s[{80+2*k}:{81+2*k}], 0")
    e("s_cmp_ge_u32 s3, 8")
    e("s_cbranch_scc1 L_S")

    D0 = 8
    X = 28
    W2 = 48
    SEL = 64
    T = 72
    AT = T + 8
    R = 92
    e("s_setprio 3")
    e("s_memrealtime s[74:75]")
    e("v_and_b32 v1, 15, v0")
    e("v_lshrrev_b32 v2, 4, v0")
    e("v_mov_b32 v3, 0")
    e("s_lshl_b32 s9, s9, 3")
    e("s_and_b32 s10, s2, 7")
    e("s_add_u32 s9, s9, s10")
    e("s_and_b32 s12, s6, 3")
    e("s_cmp_lt_u32 s6, 4")
    e("s_movk_i32 s10, 3456")
    e("s_cselect_b32 s10, 8192, s10")
    e("s_cbranch_scc0 L_dec_ffn")
    e("s_lshl_b32 s13, s4, 2")
    e("s_add_u32 s13, s13, s12")
    e("s_lshl_b32 s11, s4, 8")
    e("s_add_u32 s14, s11, 128")
    e("s_mov_b32 s100, 1")
    e("s_branch L_dec_done")
    e.label("L_dec_ffn")
    e("s_lshl_b32 s11, s9, 7")
    e("s_mov_b32 s14, s11")
    e("s_lshl_b32 s13, s9, 2")
    e("s_add_u32 s13, s13, s12")
    e("s_add_u32 s13, s13, 128")
    e("s_cmp_lt_u32 s9, 27")
    e("s_cselect_b32 s100, 1, 0")
    e.label("L_dec_done")
    e("s_mov_b32 s99, s9")
    e("s_mul_i32 s12, s12, 160")
    e("s_mul_i32 s15, s3, 20")
    e("s_add_u32 s12, s12, s15")
    e("s_mul_i32 s15, s12, s10")
    e("s_add_u32 s11, s11, s15")
    e("s_add_u32 s14, s14, s15")
    e("s_lshl_b32 s12, s12, 1")
    e("s_lshl_b32 s15, s10, 1")
    e("v_lshrrev_b32 v6, 5, v0")
    e("v_mul_u32_u24 v7, 10, v6")
    e("v_and_b32 v5, 1, v2")
    e("v_add_u32 v7, v7, v5")
    e("v_and_b32 v4, 7, v0")
    e("v_lshlrev_b32 v4, 4, v4")
    e("v_mad_u32_u24 v4, v7, s10, v4")
    e("v_lshrrev_b32 v5, 2, v1")
    e("v_mul_u32_u24 v5, 1280, v5")
    e("v_mul_u32_u24 v6, 20, v6")
    e("v_add_u32 v5, v5, v6")
    e("s_waitcnt lgkmcnt(0)")
    srd(68, 38, 256)
    e("s_or_b32 s9, s2, s3")
    e("s_cmp_lg_u32 s9, 0")
    e("s_cbranch_scc1 L_nonon")
    e("s_or_b32 s75, s75, 0x80000000")
    e(f"v_mov_b32 v{D0+4}, s74")
    e(f"v_mov_b32 v{D0+5}, s75")
    e(f"v_mov_b32 v{D0+6}, 0")
    e(f"v_mov_b32 v{D0+7}, 0")
    e("s_mov_b64 exec, 1")
    e(f"buffer_atomic_cmpswap_x2 v[{D0+4}:{D0+7}], v3, s[68:71], 0 offen sc1")
    e("s_mov_b64 exec, -1")
    e.label("L_nonon")
    srd(56, 16, 5120)
    XV = T
    e("s_cmp_eq_u32 s100, 0")
    e("s_cbranch_scc1 L_nos1load")
    e(f"buffer_load_dwordx4 v[{XV}:{XV+3}], v5, s[56:59], s12 offen")
    e(f"buffer_load_dword v{XV+4}, v5, s[56:59], s12 offen offset:16")
    e("s_cmp_lt_u32 s6, 4")
    e("s_cselect_b32 s48, s22, s28")
    e("s_cselect_b32 s49, s23, s29")
    e("s_cselect_b32 s52, s22, s30")
    e("s_cselect_b32 s53, s23, s31")
    e("s_add_u32 s48, s48, s11"); e("s_addc_u32 s49, s49, 0")
    e("s_add_u32 s52, s52, s14"); e("s_addc_u32 s53, s53, 0")
    e("v_cmp_gt_u32 vcc, 8, v1")
    e("v_mov_b32 v6, s52"); e("v_mov_b32 v7, s53")
    e(f"v_mov_b32 v{D0}, s48"); e(f"v_mov_b32 v{D0+1}, s49")
    e(f"v_cndmask_b32 v6, v6, v{D0}, vcc")
    e(f"v_cndmask_b32 v7, v7, v{D0+1}, vcc")
    e("v_add_co_u32 v6, vcc, v6, v4")
    e("v_addc_co_u32 v7, vcc, 0, v7, vcc")
    for i in range(5):
        e(f"global_load_dwordx4 v[{X+4*i}:{X+4*i+3}], v[6:7], off nt")
        if i < 4:
            e("v_add_co_u32 v6, vcc, s15, v6")
            e("v_addc_co_u32 v7, vcc, 0, v7, vcc")
    e.label("L_nos1load")
    NV = T + 6
    e("s_cmp_lg_u32 s3, 2")
    e("s_cbranch_scc1 L_nonp")
    e(f"buffer_load_dwordx2 v[{NV}:{NV+1}], v3, s[68:71], 0 offen sc1")
    e.label("L_nonp")
    e("s_cmp_lg_u32 s3, 1")
    e("s_cbranch_scc1 L_noinit")
    for r in range(4): e(f"v_mov_b32 v{D0+r}, 0")
    e("v_lshlrev_b32 v6, 4, v0")
    e(f"ds_write_b128 v6, v[{D0}:{D0+3}]")
    e("s_waitcnt lgkmcnt(0)")
    e.label("L_noinit")
    e("s_barrier")
    e("s_mov_b32 s52, s99")
    e("s_mov_b32 s53, s100")
    if clean:
        e("s_mov_b32 s54, 0"); e("s_mov_b32 s55, 0")
        for r in range(5): e(f"v_mov_b32 v{PG+r}, 0")
    srd(44, 40, 0x20000000 if diag else WS_USED)
    e("s_getreg_b32 s51, hwreg(HW_REG_XCC_ID, 0, 4)")
    e("v_and_b32 v7, 1, v0")
    e("v_lshlrev_b32 v7, 4, v7")
    e("v_mov_b32 v6, 0x0c0c0000")
    e("v_lshrrev_b32 v6, v7, v6")
    e(f"v_mov_b32 v{SEL}, 0x0100")
    e(f"v_mov_b32 v{SEL+2}, 0x0302")
    e(f"v_lshlrev_b32 v{SEL}, v7, v{SEL}")
    e(f"v_lshlrev_b32 v{SEL+2}, v7, v{SEL+2}")
    e(f"v_or_b32 v{SEL}, v{SEL}, v6")
    e(f"v_or_b32 v{SEL+2}, v{SEL+2}, v6")
    e("v_mov_b32 v6, 0x0c0c0c0c")
    e("v_and_b32 v7, 2, v0")
    e("v_cmp_eq_u32 vcc, 0, v7")
    e(f"v_cndmask_b32 v{SEL+1}, v{SEL}, v6, vcc")
    e(f"v_cndmask_b32 v{SEL+3}, v{SEL+2}, v6, vcc")
    e(f"v_cndmask_b32 v{SEL}, v6, v{SEL}, vcc")
    e(f"v_cndmask_b32 v{SEL+2}, v6, v{SEL+2}, vcc")
    e("v_and_b32 v7, 1, v2")
    e("v_cmp_eq_u32 vcc, 1, v7")
    e(f"v_cndmask_b32 v6, v{SEL}, v{SEL+2}, vcc")
    e(f"v_cndmask_b32 v7, v{SEL+1}, v{SEL+3}, vcc")
    e("s_cmp_lt_u32 s6, 5")
    e("s_cselect_b32 s60, s24, s32")
    e("s_cselect_b32 s61, s25, s33")
    e("s_mov_b32 s62, 2211840")
    e("s_cselect_b32 s62, 5242880, s62")
    e("s_mov_b32 s63, 0x20000")
    e("s_and_b32 s61, s61, 0xffff")
    e("v_lshlrev_b32 v4, 5, v1")
    e("v_lshl_add_u32 v4, v2, 9, v4")
    e("s_waitcnt vmcnt(0)")
    st(1)
    e("s_cmp_eq_u32 s53, 0")
    e("s_cbranch_scc1 L_nos1")
    DL = D0; DH = D0 + 4
    for i in range(5):
        e(f"v_perm_b32 v{AT+2*i}, v{XV+i}, v{XV+i}, v6")
        e(f"v_perm_b32 v{AT+2*i+1}, v{XV+i}, v{XV+i}, v7")
    for i in range(5):
        A0 = AT + 2 * i
        cl = "0" if i == 0 else f"v[{DL}:{DL+3}]"
        ch = "0" if i == 0 else f"v[{DH}:{DH+3}]"
        e(f"v_mfma_f32_16x16x16_bf16 v[{DL}:{DL+3}], v[{A0}:{A0+1}], v[{X+4*i}:{X+4*i+1}], {cl}")
        e(f"v_mfma_f32_16x16x16_bf16 v[{DH}:{DH+3}], v[{A0}:{A0+1}], v[{X+4*i+2}:{X+4*i+3}], {ch}")
    e("s_lshl_b32 s9, s3, 11")
    e("v_add_u32 v6, s9, v4")
    e(f"ds_write_b128 v6, v[{DL}:{DL+3}] offset:{L_P}")
    e(f"ds_write_b128 v6, v[{DH}:{DH+3}] offset:{L_P+16}")
    lds_signal(L_C1, 7)
    e.label("L_nos1")
    e.fence(10)
    def reduce_publish(lbase, pstride, loff_v, goff_v, soff, pol=" sc1", O=T):
        e(f"ds_read_b64 v[{O}:{O+1}], v{loff_v} offset:{lbase}")
        for k in range(1, 8): e(f"ds_read_b64 v[{T+2+2*k}:{T+3+2*k}], v{loff_v} offset:{lbase + pstride*k}")
        e(f"v_mov_b32 v{O+2}, s76")
        e(f"v_mov_b32 v{O+3}, s77")
        e("s_waitcnt lgkmcnt(4)")
        e(f"v_pk_add_f32 v[{O}:{O+1}], v[{O}:{O+1}], v[{T+4}:{T+5}]")
        e(f"v_pk_add_f32 v[{T+6}:{T+7}], v[{T+6}:{T+7}], v[{T+8}:{T+9}]")
        e("s_waitcnt lgkmcnt(0)")
        e(f"v_pk_add_f32 v[{T+10}:{T+11}], v[{T+10}:{T+11}], v[{T+12}:{T+13}]")
        e(f"v_pk_add_f32 v[{T+14}:{T+15}], v[{T+14}:{T+15}], v[{T+16}:{T+17}]")
        e(f"v_pk_add_f32 v[{O}:{O+1}], v[{O}:{O+1}], v[{T+6}:{T+7}]")
        e(f"v_pk_add_f32 v[{T+10}:{T+11}], v[{T+10}:{T+11}], v[{T+14}:{T+15}]")
        e(f"v_pk_add_f32 v[{O}:{O+1}], v[{O}:{O+1}], v[{T+10}:{T+11}]")
        e(f"buffer_store_dwordx4 v[{O}:{O+3}], v{goff_v}, s[44:47], {soff} offen{pol}")
        e("s_nop 1")
    def get_nonce(tv):
        lds_wait(L_N, 1, tv)
        e(f"ds_read_b64 v[{tv}:{tv+1}], v3 offset:{L_NV}")
        e("s_waitcnt lgkmcnt(0)")
        e(f"v_readfirstlane_b32 s76, v{tv}")
        e(f"v_readfirstlane_b32 s77, v{tv+1}")
    e("s_cmp_eq_u32 s3, 2"); e("s_cbranch_scc1 L_role_q")
    e("s_cmp_eq_u32 s3, 4"); e("s_cbranch_scc1 L_role_g")
    get_nonce(T)
    e("s_cmp_eq_u32 s3, 3"); e("s_cbranch_scc1 L_role_s")
    e("s_cmp_eq_u32 s3, 5"); e("s_cbranch_scc1 " + ("L_role_p" if pw else "L_roles_done"))
    e("s_cmp_eq_u32 s53, 0"); e("s_cbranch_scc1 L_roles_done")
    e("s_and_b32 s9, s3, 3")
    e("s_lshl_b32 s10, s9, 9")
    e("v_lshl_add_u32 v6, v0, 3, s10")
    e(f"v_lshlrev_b32 v{PG+4}, 1, v6")
    e("s_cmp_lt_u32 s6, 4")
    e("s_cbranch_scc1 L_pubq")
    e("v_bfe_u32 v6, v0, 3, 2")
    e("v_lshlrev_b32 v6, 9, v6")
    e(f"v_bfe_u32 v{T}, v0, 2, 1")
    e(f"v_lshl_add_u32 v6, v{T}, 8, v6")
    e(f"v_lshrrev_b32 v{T}, 5, v0")
    e(f"v_lshl_add_u32 v6, v{T}, 5, v6")
    e(f"v_and_b32 v{T}, 3, v0")
    e(f"v_lshl_add_u32 v6, v{T}, 3, v6")
    e("s_lshl_b32 s10, s9, 6")
    e("v_add_u32 v6, s10, v6")
    e.label("L_pubq")
    e("s_lshl_b32 s55, s13, 12")
    lds_wait(L_C1, 8, T)
    reduce_publish(L_P, 2048, 6, PG + 4, "s55", pol="", O=PG)
    if clean: e("s_mov_b32 s54, 1")
    lds_wait(L_LOC, 1, T, sl=lsleep)
    e("s_cmp_eq_u32 s43, 2")
    e("s_cbranch_scc1 L_roles_done")
    e(f"buffer_store_dwordx4 v[{PG}:{PG+3}], v{PG+4}, s[44:47], s55 offen sc1")
    e("s_branch L_roles_done")
    e.label("L_role_q")
    e.fence(2)
    L = e.newlabel('FL'); D = e.newlabel('FLD')
    e("s_mov_b32 s42, 20000")
    e.label(L)
    e(f"v_readfirstlane_b32 s77, v{NV+1}")
    e(f"v_readfirstlane_b32 s76, v{NV}")
    e("s_cmp_lg_u32 s77, 0")
    e(f"s_cbranch_scc1 {D}")
    e(f"buffer_load_dwordx2 v[{NV}:{NV+1}], v3, s[68:71], 0 offen sc1")
    e("s_sub_u32 s42, s42, 1")
    e("s_cmp_lg_u32 s42, 0")
    e("s_waitcnt vmcnt(0)")
    e(f"s_cbranch_scc1 {L}")
    e.label(D)
    e(f"v_mov_b32 v{NV-2}, s51")
    e(f"v_mov_b32 v{NV-1}, 0")
    e("s_lshl_b32 s9, s7, 4")
    e(f"s_add_u32 s9, s9, {HELLO}")
    e("s_mov_b64 exec, 1")
    e(f"ds_write_b64 v3, v[{NV}:{NV+1}] offset:{L_NV}")
    e("v_mov_b32 v7, 1")
    e(f"ds_write_b32 v3, v7 offset:{L_N}")
    e(f"buffer_store_dwordx4 v[{NV-2}:{NV+1}], v3, s[44:47], s9 offen")
    e("s_mov_b64 exec, -1")
    e("v_lshlrev_b32 v6, 4, v0")
    e("v_and_b32 v7, 0x70, v6")
    e("s_lshl_b32 s9, s4, 7")
    e(f"s_add_u32 s9, s9, {HELLO}")
    e(f"s_mov_b32 s42, {1 if abl & 2 else hr}")
    L = e.newlabel('HL'); D = e.newlabel('HD')
    e.label(L)
    e(f"buffer_load_dwordx4 v[{X+16}:{X+19}], v7, s[44:47], s9 offen sc1")
    e("s_waitcnt vmcnt(0)")
    e(f"v_cmp_ne_u64 vcc, s[76:77], v[{X+18}:{X+19}]")
    e(f"v_cmp_ne_u32 s[78:79], s51, v{X+16}")
    e("s_or_b64 vcc, vcc, s[78:79]")
    e("s_cselect_b32 s10, 1, 2")
    e(f"s_cbranch_scc0 {D}")
    e("s_sub_u32 s42, s42, 1")
    e("s_cmp_lg_u32 s42, 0")
    e(f"s_cbranch_scc1 {L}")
    e.label(D)
    e("v_mov_b32 v7, s10")
    e("s_mov_b64 exec, 1")
    e(f"ds_write_b32 v3, v7 offset:{L_LOC}")
    e("s_mov_b64 exec, -1")
    e("s_lshl_b32 s9, s4, 14")
    e("s_lshl_b32 s10, s5, 10")
    e("s_add_u32 s9, s9, s10")
    for k in range(1, 4): e(f"s_add_u32 s{9+k}, s9, {4096*k}")
    if not (abl & 2): gather([f"buffer_load_dwordx4 v[{X+4*k}:{X+4*k+3}], v6, s[44:47], s{9+k} offen sc1" for k in range(4)], [X + 4 * k for k in range(4)])
    e(f"v_pk_add_f32 v[{X}:{X+1}], v[{X}:{X+1}], v[{X+4}:{X+5}]")
    e(f"v_pk_add_f32 v[{X+8}:{X+9}], v[{X+8}:{X+9}], v[{X+12}:{X+13}]")
    e(f"v_pk_add_f32 v[{X}:{X+1}], v[{X}:{X+1}], v[{X+8}:{X+9}]")
    e(f"v_cvt_pk_bf16_f32 v{X}, v{X}, v{X+1}")
    e("v_lshlrev_b32 v6, 2, v0")
    e(f"ds_write_b32 v6, v{X} offset:{L_QB}")
    lds_signal(L_Q, 7, add=False)
    e("s_branch L_roles_done")
    if pw:
        e.label("L_role_p")
        e.fence(2)
        for r in range(4): e(f"v_mov_b32 v{X+r}, 0")
        e("v_lshlrev_b32 v6, 4, v0")
        e("s_lshl_b32 s9, s7, 10")
        e(f"s_add_u32 s9, s9, {OXL}")
        if pw == 2: lds_wait(L_Q, 1, T, sl=lsleep)
        if pw == 3: lds_wait(L_CSTAT, 1, T, sl=lsleep)
        e(f"buffer_store_dwordx4 v[{X}:{X+3}], v6, s[44:47], s9 offen")
        e("s_waitcnt vmcnt(0)")
        lds_signal(L_PW, 7, add=False)
        e("s_branch L_roles_done")
    e.label("L_role_s")
    e.fence(2)
    M = X; Lr = X + 1; MW = X + 8; LW = X + 9; E0 = X + 13; AD = X + 14
    e(f"v_and_b32 v{AD}, 7, v0")
    e(f"v_lshlrev_b32 v{AD}, 2, v{AD}")
    e("s_lshl_b32 s9, s7, 4")
    e(f"s_add_u32 s9, s9, {STATS}")
    e(f"v_mov_b32 v{X+2}, s76")
    e(f"v_mov_b32 v{X+3}, s77")
    lds_wait(L_CSTAT, 8, T, sl=lsleep)
    e(f"ds_read_b32 v{MW}, v{AD} offset:{L_MW}")
    e(f"ds_read_b32 v{LW}, v{AD} offset:{L_LW}")
    e(f"ds_read_b32 v{T}, v3 offset:{L_LOC}")
    e("s_waitcnt lgkmcnt(0)")
    e(f"v_readfirstlane_b32 s10, v{T}")
    e(f"v_mov_b32 v{M}, v{MW}")
    for k in (1, 2, 4): e(f"v_max_f32_dpp v{M}, v{M}, v{M} row_ror:{k} {DPPM}")
    e(f"v_sub_f32 v{E0}, v{MW}, v{M}")
    e(f"v_exp_f32 v{E0}, v{E0}")
    e(f"v_mul_f32 v{Lr}, v{E0}, v{LW}")
    for k in (1, 2, 4): e(f"v_add_f32_dpp v{Lr}, v{Lr}, v{Lr} row_ror:{k} {DPPM}")
    e(f"v_and_b32 v{Lr}, -16, v{Lr}")
    e(f"v_or_b32 v{Lr}, s51, v{Lr}")
    e("s_mov_b64 exec, 1")
    e("s_cmp_eq_u32 s10, 2")
    e("s_cbranch_scc1 L_stl")
    e(f"buffer_store_dwordx4 v[{M}:{M+3}], v3, s[44:47], s9 offen sc1")
    e("s_branch L_std")
    e.label("L_stl")
    e(f"buffer_store_dwordx4 v[{M}:{M+3}], v3, s[44:47], s9 offen")
    e.label("L_std")
    e("s_mov_b64 exec, -1")
    e("s_branch L_roles_done")
    e.label("L_role_g")
    e.fence(2)
    e("s_cmp_ge_u32 s73, 160")
    e("s_cbranch_scc1 L_nogate")
    srd(64, 34, 1280)
    GX = X; GW = X + 8
    e("s_bfe_u32 s11, s73, 0x20003")
    e("s_mul_i32 s14, s11, 1280")
    e("v_lshlrev_b32 v6, 2, v0")
    for k in range(5): e(f"buffer_load_dword v{GX+k}, v6, s[56:59], s14 offen offset:{256*k}")
    for k in range(5): e(f"buffer_load_dword v{GW+k}, v6, s[64:67], 0 offen offset:{256*k}")
    SUM = T; P0 = T + 1; P1 = T + 2; P2 = T + 3; P3 = T + 4
    e(f"v_mov_b32 v{SUM}, 0")
    e("s_waitcnt vmcnt(0)")
    for k in range(5):
        e(f"v_lshlrev_b32 v{P0}, 16, v{GX+k}")
        e(f"v_lshlrev_b32 v{P1}, 16, v{GW+k}")
        e(f"v_and_b32 v{P2}, 0xffff0000, v{GX+k}")
        e(f"v_and_b32 v{P3}, 0xffff0000, v{GW+k}")
        e(f"v_mul_f32 v{P0}, v{P0}, v{P1}")
        e(f"v_mul_f32 v{P2}, v{P2}, v{P3}")
        e(f"v_cvt_pk_bf16_f32 v{P0}, v{P0}, v{P2}")
        e(f"v_lshlrev_b32 v{P1}, 16, v{P0}")
        e(f"v_and_b32 v{P2}, 0xffff0000, v{P0}")
        e(f"v_add_f32 v{SUM}, v{SUM}, v{P1}")
        e(f"v_add_f32 v{SUM}, v{SUM}, v{P2}")
    allreduce("v_add_f32", SUM, P0)
    bf16r(SUM, P0)
    e(f"v_mul_f32 v{SUM}, 0xbfb8aa3b, v{SUM}")
    e(f"v_exp_f32 v{SUM}, v{SUM}")
    e(f"v_add_f32 v{SUM}, 1.0, v{SUM}")
    e(f"v_rcp_f32 v{SUM}, v{SUM}")
    bf16r(SUM, P0)
    e(f"v_sub_f32 v{P0}, 1.0, v{SUM}")
    bf16r(P0, P1)
    e("s_mov_b64 exec, 1")
    e(f"ds_write_b64 v3, v[{SUM}:{SUM+1}] offset:{L_GV}")
    e("s_mov_b64 exec, -1")
    lds_signal(L_G, 7, add=False)
    e.label("L_nogate")
    e.fence(2)
    get_nonce(T)
    e.label("L_roles_done")
    e.fence(4)
    st(2)
    e(f"v_and_b32 v{R+6}, 3, v0")
    e(f"v_bfe_u32 v{R+7}, v0, 2, 2")
    def wait_vi():
        if ap != 3: e(f"s_setprio {ap}")
        lds_wait(L_VI, 8, T, sl=lsleep)
    def resolve():
        pass
    e("s_cmp_ge_u32 s6, 5")
    e("s_cbranch_scc1 L_wd")
    AEND = "L_clean" if clean else END
    e(f"v_lshlrev_b32 v{R}, 4, v1")
    e("v_mov_b32 v7, 5120")
    e(f"v_mad_u32_u24 v{R}, v2, v7, v{R}")
    e("s_lshl_b32 s9, s4, 7")
    e("s_lshl_b32 s10, s3, 4")
    e("s_add_u32 s9, s9, s10")
    e("s_mul_i32 s9, s9, 1280")
    e("s_lshl_b32 s10, s6, 8")
    e("s_add_u32 s9, s9, s10")
    e(f"v_and_b32 v7, 1, v{R+6}")
    e(f"v_lshl_add_u32 v7, v{R+7}, 1, v7")
    e(f"v_lshlrev_b32 v{R+1}, 4, v7")
    e("s_lshl_b32 s10, s4, 7")
    e(f"s_add_u32 s10, s10, {STATS}")
    e("v_lshlrev_b32 v6, 10, v7")
    e("v_lshl_add_u32 v6, v2, 5, v6")
    e(f"v_lshrrev_b32 v7, 1, v{R+6}")
    e(f"v_lshl_add_u32 v{R+2}, v7, 4, v6")
    e("s_lshl_b32 s12, s4, 13")
    e("s_lshl_b32 s11, s3, 7")
    e("s_add_u32 s12, s12, s11")
    e(f"s_add_u32 s12, s12, {OX}")
    e("s_lshl_b32 s11, s3, 11")
    e(f"v_add_u32 v{R+3}, s11, v4")
    e("s_lshl_b32 s11, s3, 9")
    e(f"v_lshl_add_u32 v{R+4}, v0, 3, s11")
    e(f"v_lshlrev_b32 v{R+5}, 1, v{R+4}")
    e("s_lshl_b32 s13, s6, 6")
    e("s_add_u32 s13, s13, s4")
    e("s_lshl_b32 s13, s13, 12")
    e(f"s_add_u32 s13, s13, {FIN}")
    wait_vi()
    if w2co: lds_wait(L_CO, w2co, T, sl=2)
    st(3)
    def wol():
        for i in range(4): e(f"buffer_load_dwordx4 v[{W2+4*i}:{W2+4*i+3}], v{R}, s[60:63], s9 offen offset:{1280*i} nt")
    if cotrig:
        wol()
        if abl & 32:
            e("s_waitcnt vmcnt(0)"); e("s_branch L_end")
        lds_wait(L_CO, cotrig, T, sl=2)
        gather([f"buffer_load_dwordx4 v[{X+4}:{X+7}], v{R+1}, s[44:47], s10 offen sc1"], [X + 4])
    else:
        gather([f"buffer_load_dwordx4 v[{X+4}:{X+7}], v{R+1}, s[44:47], s10 offen sc1"], [X + 4], after_first=wol, nafter=4)
    e(f"v_max_f32_dpp v{X+8}, v{X+4}, v{X+4} quad_perm:[1,0,3,2] {DPPM}")
    e(f"v_and_b32 v{X+10}, 15, v{X+5}")
    e(f"v_sub_f32 v{X+8}, v{X+4}, v{X+8}")
    e(f"v_cmp_eq_u32 vcc, s51, v{X+10}")
    e(f"v_exp_f32 v{X+8}, v{X+8}")
    e(f"v_add_u32 v{X+10}, {OXL-OX}, v{R+2}")
    e(f"v_cndmask_b32 v{R+2}, v{R+2}, v{X+10}, vcc")
    e(f"v_mul_f32 v{X+9}, v{X+8}, v{X+5}")
    e("v_mov_b32 v7, 1")
    e(f"v_add_f32_dpp v{X+9}, v{X+9}, v{X+9} quad_perm:[1,0,3,2] {DPPM}")
    e(f"v_rcp_f32 v{X+9}, v{X+9}")
    e(f"v_mul_f32 v{X+8}, v{X+8}, v{X+9}")
    st(4)
    lds_wait(L_CO, oxtrig, T, sl=cosl)
    if ap2: e(f"s_setprio {ap2}")
    gather([f"buffer_load_dwordx4 v[{X}:{X+3}], v{R+2}, s[44:47], s12 offen sc1"], [X])
    if abl & 8192: e("s_branch L_end")
    if diag:
        e("s_cmp_lg_u32 s3, 6"); e("s_cbranch_scc1 L_d1"); st(5); e.label("L_d1")
    e(f"v_mul_f32 v{X}, v{X+8}, v{X}")
    e(f"v_mul_f32 v{X+1}, v{X+8}, v{X+1}")
    for c in range(2): e(f"v_add_f32_dpp v{X+c}, v{X+c}, v{X+c} quad_perm:[1,0,3,2] {DPPM}")
    e(f"v_cvt_pk_bf16_f32 v{X}, v{X}, v{X+1}")
    e(f"v_mov_b32_dpp v{X+2}, v{X} quad_perm:[0,0,0,0] {DPPM}")
    e(f"v_mov_b32_dpp v{X+3}, v{X} quad_perm:[2,2,2,2] {DPPM}")
    for i in range(4):
        e(f"v_perm_b32 v{AT+2*i}, v{X+2+(i>>1)}, v{X+2+(i>>1)}, v{SEL+2*(i&1)}")
        e(f"v_perm_b32 v{AT+2*i+1}, v{X+2+(i>>1)}, v{X+2+(i>>1)}, v{SEL+2*(i&1)+1}")
    for i in range(4):
        r = W2 + 4 * i
        for hf in range(2):
            d = D0 + 4 * hf
            cc = "0" if i == 0 else f"v[{d}:{d+3}]"
            e(f"v_mfma_f32_16x16x16_bf16 v[{d}:{d+3}], v[{AT+2*i}:{AT+2*i+1}], v[{r+2*hf}:{r+2*hf+1}], {cc}")
    e(f"ds_write_b128 v{R+3}, v[{D0}:{D0+3}] offset:{L_P2}")
    e(f"ds_write_b128 v{R+3}, v[{D0+4}:{D0+7}] offset:{L_P2+16}")
    if b5:
        e("s_cmp_ge_u32 s3, 4")
        e("s_waitcnt lgkmcnt(0)")
        e("s_barrier")
        e(f"s_cbranch_scc1 {AEND}")
    else:
        e("s_mov_b64 exec, 1")
        e(f"ds_add_u32 v3, v7 offset:{L_CB}")
        e("s_mov_b64 exec, -1")
        e("s_cmp_ge_u32 s3, 4")
        e(f"s_cbranch_scc1 {AEND}")
        lds_wait(L_CB, 8, T, sl=0)
    reduce_publish(L_P2, 2048, R + 4, R + 5, "s13")
    st(5)
    e(f"s_branch {AEND}")
    e.label("L_wd")
    e.fence(2)
    e("s_cmp_ge_u32 s52, 27")
    e(f"s_cbranch_scc1 {AEND}")
    e(f"v_lshlrev_b32 v{R}, 4, v1")
    e("v_mov_b32 v7, 2560")
    e(f"v_mad_u32_u24 v{R}, v2, v7, v{R}")
    e("s_lshl_b32 s9, s52, 6")
    e("s_lshl_b32 s10, s3, 3")
    e("s_add_u32 s9, s9, s10")
    e("s_mul_i32 s9, s9, 1280")
    e("s_sub_u32 s10, s6, 5")
    e("s_lshl_b32 s10, s10, 9")
    e("s_add_u32 s9, s9, s10")
    e("s_cmp_lt_u32 s6, 7")
    e("s_cselect_b32 s10, s9, 0x7fff0000")
    e(f"v_lshrrev_b32 v6, 1, v{R+6}")
    e("v_lshlrev_b32 v6, 12, v6")
    e(f"v_lshl_add_u32 v6, v{R+7}, 7, v6")
    e(f"v_and_b32 v7, 1, v{R+6}")
    e("v_lshl_add_u32 v6, v7, 6, v6")
    e(f"v_lshl_add_u32 v{R+1}, v2, 4, v6")
    e("s_lshl_b32 s11, s52, 14")
    e(f"s_add_u32 s11, s11, {128*4096}")
    e("s_lshl_b32 s12, s3, 9")
    e("s_add_u32 s11, s11, s12")
    e("s_add_u32 s12, s11, 8192")
    e("s_lshl_b32 s13, s3, 12")
    e(f"v_add_u32 v{R+3}, s13, v4")
    e("s_lshl_b32 s13, s3, 9")
    e(f"v_lshl_add_u32 v{R+4}, v0, 3, s13")
    e("s_and_b32 s13, s3, 3")
    e("s_lshl_b32 s13, s13, 10")
    e(f"v_lshl_add_u32 v{R+5}, v0, 4, s13")
    e("s_lshr_b32 s13, s3, 2")
    e("s_sub_u32 s14, s6, 5")
    e("s_lshl_b32 s14, s14, 1")
    e("s_add_u32 s14, s14, s13")
    e("s_lshl_b32 s13, s14, 6")
    e("s_add_u32 s13, s13, s52")
    e("s_add_u32 s13, s13, 32")
    e("s_lshl_b32 s13, s13, 12")
    e(f"s_add_u32 s13, s13, {FIN}")
    wait_vi()
    if wdco: lds_wait(L_CO, wdco, T, sl=2)
    st(3)
    def wdl():
        for c in range(2):
            for i in range(2):
                e(f"buffer_load_dwordx4 v[{W2+8*c+4*i}:{W2+8*c+4*i+3}], v{R}, s[60:63], s{9+c} offen offset:{1280*i+256*c} nt")
    if abl & 32:
        wdl(); e("s_waitcnt vmcnt(0)"); e("s_branch L_end")
    gather([f"buffer_load_dwordx4 v[{X+4*k}:{X+4*k+3}], v{R+1}, s[44:47], s{11+k} offen sc1" for k in range(2)], [X, X + 4], after_first=wdl, nafter=4)
    e(f"v_pk_add_f32 v[{X}:{X+1}], v[{X}:{X+1}], v[{X+4}:{X+5}]")
    for c in range(2): e(f"v_add_f32_dpp v{X+c}, v{X+c}, v{X+c} quad_perm:[2,3,0,1] {DPPM}")
    e(f"v_cvt_pk_bf16_f32 v{X}, v{X}, v{X+1}")
    G = X + 4; U = X + 6; Y = X + 8
    e(f"v_mov_b32_dpp v{X+2}, v{X} quad_perm:[0,0,0,0] {DPPM}")
    e(f"v_mov_b32_dpp v{X+3}, v{X} quad_perm:[1,1,1,1] {DPPM}")
    e(f"v_lshlrev_b32 v{G}, 16, v{X+2}"); e(f"v_and_b32 v{G+1}, 0xffff0000, v{X+2}")
    e(f"v_lshlrev_b32 v{U}, 16, v{X+3}"); e(f"v_and_b32 v{U+1}, 0xffff0000, v{X+3}")
    for c in range(2): e(f"v_mul_f32 v{Y+c}, v{G+c}, v{G+c}")
    for c in range(2): e(f"v_mul_f32 v{Y+c}, 0x3d372713, v{Y+c}")
    for c in range(2): e(f"v_fma_f32 v{Y+c}, v{Y+c}, v{G+c}, v{G+c}")
    for c in range(2): e(f"v_mul_f32 v{Y+c}, 0xc0135761, v{Y+c}")
    for c in range(2): e(f"v_exp_f32 v{Y+c}, v{Y+c}")
    for c in range(2): e(f"v_add_f32 v{Y+c}, 1.0, v{Y+c}")
    for c in range(2): e(f"v_rcp_f32 v{Y+c}, v{Y+c}")
    for c in range(2): e(f"v_mul_f32 v{G+c}, v{G+c}, v{Y+c}")
    e(f"v_cvt_pk_bf16_f32 v{Y}, v{G}, v{G+1}")
    e(f"v_lshlrev_b32 v{G}, 16, v{Y}"); e(f"v_and_b32 v{G+1}, 0xffff0000, v{Y}")
    for c in range(2): e(f"v_mul_f32 v{G+c}, v{G+c}, v{U+c}")
    e(f"v_cvt_pk_bf16_f32 v{Y}, v{G}, v{G+1}")
    for i in range(2):
        e(f"v_perm_b32 v{AT+2*i}, v{Y}, v{Y}, v{SEL+2*i}")
        e(f"v_perm_b32 v{AT+2*i+1}, v{Y}, v{Y}, v{SEL+2*i+1}")
    e("s_waitcnt vmcnt(0)")
    for c in range(2):
        for i in range(2):
            r = W2 + 8 * c + 4 * i
            for hf in range(2):
                d = D0 + 8 * c + 4 * hf
                cc = "0" if i == 0 else f"v[{d}:{d+3}]"
                e(f"v_mfma_f32_16x16x16_bf16 v[{d}:{d+3}], v[{AT+2*i}:{AT+2*i+1}], v[{r+2*hf}:{r+2*hf+1}], {cc}")
    for c in range(2):
        for hf in range(2):
            d = D0 + 8 * c + 4 * hf
            e(f"ds_write_b128 v{R+3}, v[{d}:{d+3}] offset:{L_P2 + 2048*c + 16*hf}")
    lds_signal(L_CB, 7)
    e("s_cmp_ge_u32 s14, 5")
    e(f"s_cbranch_scc1 {AEND}")
    lds_wait(L_CB, 8, T, sl=0)
    reduce_publish(L_P2, 4096, R + 4, R + 5, "s13")
    st(4)
    e(f"s_branch {AEND}")

    if clean:
        e.label("L_clean")
        e.fence(2)
        e("s_cmp_eq_u32 s54, 0")
        e(f"s_cbranch_scc1 {END}")
        e(f"buffer_store_dwordx4 v[{PG}:{PG+3}], v{PG+4}, s[44:47], s55 offen sc1")
        e(f"s_branch {END}")
    e.label("L_S")
    e.fence(4)
    e("s_sub_u32 s3, s3, 8")
    KR = 64; VR0 = 32; AU = 16
    e("s_mul_i32 s14, s3, 5")
    e("s_add_u32 s14, s14, s8")
    e("s_add_u32 s14, s14, s2")
    e("s_bfe_u32 s15, s14, 0x20004")
    e("s_and_b32 s14, s14, 15")
    e("v_bfe_u32 v1, v0, 2, 2")
    e("v_xor_b32 v1, s15, v1")
    e("v_lshlrev_b32 v1, 8, v1")
    e("v_and_b32 v2, 3, v0")
    e("v_lshrrev_b32 v3, 4, v0")
    e("v_lshl_add_u32 v2, v3, 2, v2")
    e("v_lshlrev_b32 v4, 4, v2")
    e("v_add_u32 v1, v4, v1")
    e("s_and_b32 s10, s14, 3")
    e("v_xor_b32 v3, s10, v3")
    e("v_and_b32 v2, 15, v0")
    e("v_lshlrev_b32 v2, 4, v2")
    e("v_lshl_add_u32 v2, v3, 10, v2")
    e("v_mov_b32 v3, 0")
    e("s_lshl_b32 s9, s5, 5")
    e("s_add_u32 s9, s9, s4")
    e("s_lshl_b32 s9, s9, 20")
    e("s_and_b32 s10, s6, 1")
    e("s_lshl_b32 s10, s10, 17")
    e("s_add_u32 s9, s9, s10")
    e("s_lshl_b32 s10, s3, 14")
    e("s_add_u32 s9, s9, s10")
    e("s_add_u32 s9, s9, 0xC0000")
    e("s_lshl_b32 s14, s14, 10")
    e("s_and_b32 s13, s14, 0x3000")
    e("s_lshl_b32 s15, s15, 8")
    e("s_or_b32 s13, s13, s15")
    e("s_waitcnt lgkmcnt(0)")
    srd(48, 18, 0x8000000)
    srd(52, 20, 0x8000000)
    srd(44, 40, 0x20000000 if diag else WS_USED)
    srd(56, 36, 5120)
    e("s_barrier")
    def kload(i):
        e(f"s_xor_b32 s10, s14, {i*1024}")
        e("s_add_u32 s10, s10, s9")
        e(f"buffer_load_dwordx4 v[{KR+4*i}:{KR+4*i+3}], v1, s[48:51], s10 offen nt")
    def vreg(i):
        return VR0 + 4 * i if i < 8 else KR + 4 * (i - 8)
    def vload(i):
        r = vreg(i)
        e(f"s_xor_b32 s10, s13, {(i//4)*4096 + (i%4)*256}")
        e("s_add_u32 s10, s10, s9")
        e(f"buffer_load_dwordx4 v[{r}:{r+3}], v2, s[52:55], s10 offen nt")
    issued = [n0]
    def vmore(k):
        for _ in range(k):
            if issued[0] < 16:
                vload(issued[0]); issued[0] += 1
                if issued[0] == 16: lds_signal(L_VI, 1)
    if adapt: e("s_mov_b32 s72, 0")
    def throttle(i):
        if ramp and ramp <= i < ramp + rampn: e(f"s_waitcnt vmcnt({ramp-1})"); return
        if i < ws_win: return
        if burst and i > 16 + n0 - burst: return
        if not adapt or i <= c0:
            e(f"s_waitcnt vmcnt({ws_win-1})")
        else:
            K = e.newlabel('TW')
            e(f"s_waitcnt vmcnt({wbig-1})")
            e("s_cmp_lg_u32 s72, 0")
            e(f"s_cbranch_scc1 {K}")
            e(f"s_waitcnt vmcnt({ws_win-1})")
            e.label(K)
    def check(i):
        if not adapt or i < c0 or (i - c0) % cstep: return
        e("s_memrealtime s[70:71]")
        if i == c0:
            e(f"ds_read_b32 v5, v3 offset:{L_NV}")
        e("s_waitcnt lgkmcnt(0)")
        if i == c0: e("v_readfirstlane_b32 s69, v5")
        e("s_sub_u32 s70, s70, s69")
        e(f"s_cmp_gt_u32 s70, {ta + tb * i}")
        e("s_cselect_b32 s72, 1, 0")
    for i in range(16):
        throttle(i)
        kload(i)
        check(i)
    for i in range(n0):
        throttle(16 + i)
        vload(i)
        check(16 + i)
    st(1)
    lds_wait(L_Q, 1, 5)
    if sq: e(f"s_setprio {sq}")
    e(f"ds_read_b128 v[12:15], v4 offset:{L_QB}")
    e("v_bfe_u32 v5, v0, 2, 2")
    e(f"s_waitcnt vmcnt({n0})")
    vmore(min(2, 8 - n0))
    st(2)
    e("s_waitcnt lgkmcnt(0)")
    for u in range(4):
        e(f"v_cmp_eq_u32 vcc, {u}, v5")
        for r in range(4):
            e(f"v_cndmask_b32 v{AU+4*u+r}, 0, v{12+r}, vcc")
    def qk(t, D):
        for u in range(4):
            i = 4 * t + u
            c = "0" if u == 0 else f"v[{D}:{D+3}]"
            e(f"v_mfma_f32_16x16x32_bf16 v[{D}:{D+3}], v[{AU+4*u}:{AU+4*u+3}], v[{KR+4*i}:{KR+4*i+3}], {c}")
    def extract(t, D):
        e(f"v_mov_b32_dpp v{4+t}, v{D} quad_perm:[0,0,0,0] {DPPM}")
        for r in range(1, 4):
            e(f"v_add_f32_dpp v{4+t}, v{D+r}, v{4+t} quad_perm:[{r},{r},{r},{r}] {DPPM}")
    qk(0, 8); qk(1, 12)
    vmore(mid)
    extract(0, 8)
    qk(2, 8)
    extract(1, 12)
    qk(3, 12)
    extract(2, 8)
    extract(3, 12)
    e("v_cvt_pk_bf16_f32 v8, v4, v5")
    e("v_cvt_pk_bf16_f32 v9, v6, v7")
    e("s_mov_b32 s11, 0x3db504f3")
    e("s_mov_b32 s12, 0x3fb8aa3b")
    e("v_lshlrev_b32 v4, 16, v8"); e("v_and_b32 v5, 0xffff0000, v8")
    e("v_lshlrev_b32 v6, 16, v9"); e("v_and_b32 v7, 0xffff0000, v9")
    for t in range(4): e(f"v_mul_f32 v{4+t}, s11, v{4+t}")
    e("v_cvt_pk_bf16_f32 v8, v4, v5")
    e("v_cvt_pk_bf16_f32 v9, v6, v7")
    e("v_lshlrev_b32 v4, 16, v8"); e("v_and_b32 v5, 0xffff0000, v8")
    e("v_lshlrev_b32 v6, 16, v9"); e("v_and_b32 v7, 0xffff0000, v9")
    for t in range(4): e(f"v_mul_f32 v{4+t}, s12, v{4+t}")
    e("v_max3_f32 v8, v4, v5, v6")
    e("v_max_f32 v8, v8, v7")
    allreduce("v_max_f32", 8, 9, rors=(4, 8))
    for t in range(4): e(f"v_sub_f32 v{4+t}, v{4+t}, v8")
    for t in range(4): e(f"v_exp_f32 v{4+t}, v{4+t}")
    e("v_add_f32 v10, v4, v5")
    e("v_add_f32 v11, v6, v7")
    e("v_add_f32 v10, v10, v11")
    allreduce("v_add_f32", 10, 9, rors=(4, 8))
    e("s_lshl_b32 s11, s3, 2")
    e("v_mov_b32 v9, s11")
    e("s_mov_b64 exec, 1")
    e(f"ds_write_b32 v9, v8 offset:{L_MW}")
    e(f"ds_write_b32 v9, v10 offset:{L_LW}")
    e("s_mov_b64 exec, -1")
    lds_signal(L_CSTAT, 11)
    st(3)
    vmore(2)
    for t in range(4): e(f"v_cvt_pk_bf16_f32 v{4+t}, v{4+t}, v{4+t}")
    masksP(8, 12, 13)
    def buildA(i, A):
        t, u = i // 4, i % 4
        for r in range(4):
            e(f"v_and_b32_dpp v{A+r}, v{4+t}, v{8+r} row_newbcast:{4*u} {DPPM}")
    OA = 12
    def pv(i, A):
        r = vreg(i)
        c = "0" if i == 0 else f"v[{OA}:{OA+3}]"
        e(f"v_mfma_f32_16x16x32_bf16 v[{OA}:{OA+3}], v[{A}:{A+3}], v[{r}:{r+3}], {c}")
    for i in range(4): buildA(i, 16 + 4 * i)
    def wait_v(i):
        e(f"s_waitcnt vmcnt({issued[0]-1-i})")
        vmore(max(0, min(16, i + 1 + vwin) - issued[0]))
    for i in range(8):
        wait_v(i)
        pv(i, 16 + 4 * (i % 4))
        if i < 4: buildA(i + 4, 16 + 4 * i)
        else:
            buildA(8 + 2 * (i - 4), 96 + 8 * (i - 4)); buildA(9 + 2 * (i - 4), 100 + 8 * (i - 4))
    for i in range(8, 16):
        if i == fpos:
            st(4)
            if sp: e(f"s_setprio {sp}")
            e("s_lshl_b32 s11, s3, 2")
            e("v_mov_b32 v17, s11")
            e("v_and_b32 v18, 15, v0")
            e("v_lshlrev_b32 v18, 3, v18")
            e("v_lshrrev_b32 v19, 4, v0")
            e("v_lshl_add_u32 v18, v19, 2, v18")
            e("v_and_b32 v19, 7, v0")
            e("v_lshlrev_b32 v19, 2, v19")
            lds_wait(L_CSTAT, 8, 16)
            if pw: lds_wait(L_PW, 1, 16)
            e(f"ds_read_b32 v16, v17 offset:{L_MW}")
            e(f"ds_read_b32 v20, v19 offset:{L_MW}")
            e(f"ds_read_b64 v[26:27], v3 offset:{L_NV}")
            e(f"ds_read_b32 v28, v3 offset:{L_LOC}")
            e("v_and_b32 v22, 1, v0")
            e("v_lshlrev_b32 v22, 8, v22")
            e("v_lshrrev_b32 v23, 1, v0")
            e("v_lshl_add_u32 v22, v23, 2, v22")
            e("v_lshlrev_b32 v23, 4, v0")
            e("v_mov_b32 v21, 1")
            e("s_lshl_b32 s15, s7, 10")
            e(f"s_add_u32 s15, s15, {OX}")
            e(f"s_add_u32 s12, s15, {OXL-OX}")
            e("s_waitcnt lgkmcnt(0)")
            for k in (1, 2, 4): e(f"v_max_f32_dpp v20, v20, v20 row_ror:{k} {DPPM}")
            e("v_readfirstlane_b32 s14, v28")
            e("v_readfirstlane_b32 s76, v26")
            e("v_readfirstlane_b32 s77, v27")
            e("v_sub_f32 v16, v16, v20")
            e("v_exp_f32 v16, v16")
        wait_v(i)
        pv(i, 96 + 4 * (i - 8))
    e("s_mov_b64 exec, 0xffffffff")
    for r in range(4): e(f"v_mul_f32 v{OA+r}, v16, v{OA+r}")
    for r in range(4): e(f"ds_add_f32 v18, v{OA+r} offset:{L_O + 128*r}")
    e("s_mov_b64 exec, 1")
    e(f"ds_add_rtn_u32 v21, v3, v21 offset:{L_CO}")
    e("s_mov_b64 exec, -1")
    e(f"ds_read2_b32 v[24:25], v22 offset0:{L_O//4} offset1:{L_O//4+32}")
    st(5)
    e("s_waitcnt lgkmcnt(0)")
    e("v_readfirstlane_b32 s11, v21")
    e("s_cmp_lg_u32 s11, 7")
    e("s_cbranch_scc1 L_nopub")
    e("buffer_store_dwordx4 v[24:27], v23, s[44:47], s12 offen")
    e("s_cmp_eq_u32 s14, 2")
    e("s_cbranch_scc1 L_nopub")
    e("buffer_store_dwordx4 v[24:27], v23, s[44:47], s15 offen sc1")
    e.label("L_nopub")
    if abl & (32 | 4096 | 8192): e("s_branch L_end")
    e("s_cmp_ge_u32 s73, 160")
    e(f"s_cbranch_scc1 {END}")
    e("s_cmp_ge_u32 s3, 4")
    e(f"s_cbranch_scc1 {END}")
    e("s_and_b32 s15, s3, 1")
    e("s_add_u32 s15, s15, 1")
    e("s_lshr_b32 s72, s3, 1")
    e("s_add_u32 s73, s73, s72")
    e("s_setprio 3")
    CA = 32
    e(f"v_lshrrev_b32 v{CA+2}, 3, v0")
    e(f"v_lshlrev_b32 v{CA+2}, 12, v{CA+2}")
    e("v_and_b32 v6, 7, v0")
    e(f"v_lshl_add_u32 v{CA+2}, v6, 4, v{CA+2}")
    e(f"v_lshrrev_b32 v{CA+3}, 5, v0")
    e(f"v_lshl_add_u32 v{CA+3}, v6, 1, v{CA+3}")
    e("s_lshl_b32 s72, s72, 7")
    e(f"v_lshl_add_u32 v{CA+1}, v{CA+3}, 3, s72")
    e(f"v_lshlrev_b32 v{CA+3}, 1, v{CA+3}")
    e("s_and_b32 s9, s73, 7")
    e("s_bfe_u32 s11, s73, 0x20003")
    e("s_lshr_b32 s10, s73, 5")
    e("s_mul_i32 s14, s11, 1280")
    e("s_lshl_b32 s12, s10, 8")
    e("s_add_u32 s14, s14, s12")
    e("s_lshl_b32 s12, s9, 5")
    e("s_add_u32 s14, s14, s12")
    e("s_lshl_b32 s64, s10, 18")
    e("s_lshl_b32 s65, s11, 10")
    e("s_add_u32 s64, s64, s65")
    e("s_lshl_b32 s65, s9, 7")
    e("s_add_u32 s64, s64, s65")
    e(f"s_add_u32 s64, s64, {FIN}")
    e("s_sub_u32 s12, s15, 1")
    e("s_lshl_b32 s12, s12, 17")
    e("s_add_u32 s64, s64, s12")
    for k in range(1, 4): e(f"s_add_u32 s{64+k}, s64, {k*32768}")
    lds_wait(L_G, 1, 8)
    e(f"ds_read_b64 v[8:9], v3 offset:{L_GV}")
    e(f"v_mov_b32 v{CA+16}, 0"); e(f"v_mov_b32 v{CA+17}, 0")
    lds_wait(L_CO, 8, 10)
    if cwait:
        e("s_and_b32 s9, s2, 7"); e("s_lshr_b32 s10, s8, 3"); e("s_lshl_b32 s10, s10, 3"); e("s_add_u32 s9, s9, s10")
        e("s_cmp_ge_u32 s9, 27")
        e("s_cbranch_scc1 L_nocw")
        lds_wait(L_CB, 8, 10)
        e.label("L_nocw")
    def colsum():
        e(f"v_pk_add_f32 v[{CA+4}:{CA+5}], v[{CA+4}:{CA+5}], v[{CA+8}:{CA+9}]")
        e(f"v_pk_add_f32 v[{CA+12}:{CA+13}], v[{CA+12}:{CA+13}], v[{CA+16}:{CA+17}]")
        e(f"v_pk_add_f32 v[{CA+4}:{CA+5}], v[{CA+4}:{CA+5}], v[{CA+12}:{CA+13}]")
        e(f"v_permlane32_swap_b32 v{CA+4}, v{CA+5}")
        e(f"v_add_f32 v{CA+4}, v{CA+4}, v{CA+5}")
        e(f"v_mov_b32 v{CA+5}, v{CA+4}")
        e(f"v_permlane16_swap_b32 v{CA+4}, v{CA+5}")
        e(f"v_add_f32 v{CA+4}, v{CA+4}, v{CA+5}")
        e(f"v_add_f32_dpp v{CA+4}, v{CA+4}, v{CA+4} row_ror:8 {DPPM}")
        e(f"v_cvt_pk_bf16_f32 v{CA+4}, v{CA+4}, v{CA+4}")
        e(f"v_lshlrev_b32 v{CA+4}, 16, v{CA+4}")
    lds = [f"buffer_load_dwordx4 v[{CA+4+4*k}:{CA+7+4*k}], v{CA+2}, s[44:47], s{64+k} offen sc1" for k in range(4)]
    bas = [CA + 4 + 4 * k for k in range(4)]
    e("s_cmp_eq_u32 s15, 1")
    e("s_cbranch_scc1 L_consA")
    gather(lds, bas, masks=[None, None, None, (0xffffff, 0)])
    colsum()
    e(f"v_mul_f32 v{CA+4}, v9, v{CA+4}")
    bf16r(CA + 4, CA + 5)
    e(f"v_mov_b32 v{CA+5}, 1")
    e("s_mov_b32 exec_lo, 0xff")
    e("s_mov_b32 exec_hi, 0xff")
    e(f"ds_write_b64 v{CA+1}, v[{CA+4}:{CA+5}] offset:{L_BV}")
    e(f"s_branch {END}")
    e.label("L_consA")
    if not pipe:
        gather(lds, bas)
        e(f"ds_read_b64 v[10:11], v{CA+1} offset:{L_BV}")
        colsum()
    else:
        ACCU = CA + 40; PM = 92
        sets = [CA + 4, CA + 20]
        e(f"v_mov_b32 v{ACCU}, 0"); e(f"v_mov_b32 v{ACCU+1}, 0")
        for k in range(4): e(f"s_mov_b64 s[{PM+2*k}:{PM+2*k+1}], -1")
        e("s_mov_b32 s42, 20000")
        def issue(b):
            for k in range(4):
                e(f"s_mov_b64 exec, s[{PM+2*k}:{PM+2*k+1}]")
                e(f"buffer_load_dwordx4 v[{b+4*k}:{b+4*k+3}], v{CA+2}, s[44:47], s{64+k} offen sc1")
        def check(b):
            e("s_waitcnt vmcnt(4)")
            for k in range(4):
                e(f"s_mov_b64 exec, s[{PM+2*k}:{PM+2*k+1}]")
                e(f"v_cmp_eq_u64 s[{16+2*k}:{17+2*k}], s[76:77], v[{b+4*k+2}:{b+4*k+3}]")
            for k in range(4):
                e(f"s_and_b64 exec, s[{16+2*k}:{17+2*k}], s[{PM+2*k}:{PM+2*k+1}]")
                e(f"v_pk_add_f32 v[{ACCU}:{ACCU+1}], v[{ACCU}:{ACCU+1}], v[{b+4*k}:{b+4*k+1}]")
                e(f"s_andn2_b64 s[{PM+2*k}:{PM+2*k+1}], s[{PM+2*k}:{PM+2*k+1}], exec")
            e(f"s_or_b64 s[78:79], s[{PM}:{PM+1}], s[{PM+2}:{PM+3}]")
            e(f"s_or_b64 s[24:25], s[{PM+4}:{PM+5}], s[{PM+6}:{PM+7}]")
            e("s_or_b64 s[78:79], s[78:79], s[24:25]")
            e("s_cbranch_scc0 L_pdone")
        issue(sets[0])
        if pdl: e(f"s_sleep {pdl}")
        e.label("L_ploop")
        issue(sets[1])
        check(sets[0])
        issue(sets[0])
        check(sets[1])
        e("s_sub_u32 s42, s42, 1")
        e("s_cbranch_scc0 L_ploop")
        e.label("L_pdone")
        e("s_mov_b64 exec, -1")
        e(f"ds_read_b64 v[10:11], v{CA+1} offset:{L_BV}")
        e(f"v_permlane32_swap_b32 v{ACCU}, v{ACCU+1}")
        e(f"v_add_f32 v{ACCU}, v{ACCU}, v{ACCU+1}")
        e(f"v_mov_b32 v{ACCU+1}, v{ACCU}")
        e(f"v_permlane16_swap_b32 v{ACCU}, v{ACCU+1}")
        e(f"v_add_f32 v{ACCU}, v{ACCU}, v{ACCU+1}")
        e(f"v_add_f32_dpp v{ACCU}, v{ACCU}, v{ACCU} row_ror:8 {DPPM}")
        e(f"v_cvt_pk_bf16_f32 v{ACCU}, v{ACCU}, v{ACCU}")
        e(f"v_lshlrev_b32 v{ACCU+2}, 16, v{ACCU}")
    RES = CA + 42 if pipe else CA + 4
    e(f"v_mul_f32 v{RES}, v8, v{RES}")
    bf16r(RES, RES + 1)
    L = e.newlabel('BW'); D = e.newlabel('BWD'); R_ = e.newlabel('BWR'); L2 = e.newlabel('BWL')
    e("s_mov_b32 s42, 0x40000")
    e.label(L)
    e("s_waitcnt lgkmcnt(0)")
    e("v_cmp_ne_u32 vcc, 1, v11")
    e("s_cmp_lg_u64 vcc, 0")
    e(f"s_cbranch_scc1 {R_}")
    e.label(D)
    stubs.append((R_, L2, D, 0, 0, False))
    e(f"v_add_f32 v{CA}, v{RES}, v10")
    e(f"v_cvt_pk_bf16_f32 v{CA}, v{CA}, v{CA}")
    e("s_mov_b32 exec_lo, 0xff")
    e("s_mov_b32 exec_hi, 0xff")
    e(f"buffer_store_short v{CA}, v{CA+3}, s[56:59], s14 offen" + ["", " sc1", " sc0 sc1", " nt"][opol])
    e("s_cmp_lg_u32 s73, 0")
    e("s_cbranch_scc1 L_norst")
    srd(68, 38, 256)
    e("s_mov_b64 exec, 1")
    e("v_mov_b32 v4, 0")
    e("v_mov_b32 v5, 0")
    e("buffer_store_dwordx2 v[4:5], v3, s[68:71], 0 offen")
    e.label("L_norst")
    if diag:
        e("s_waitcnt vmcnt(0)")
        e("s_memrealtime s[70:71]")
        e("s_waitcnt lgkmcnt(0)")
        e("s_mov_b64 exec, 1")
        e(f"s_mul_i32 s100, s2, {NST*8}")
        e(f"s_add_u32 s100, s100, {STAMP}")
        e("v_mov_b32 v4, s70"); e("v_mov_b32 v5, s71")
        e("s_cmp_lg_u32 s3, 0"); e("s_cbranch_scc1 L_fin")
        e(f"buffer_store_dwordx2 v[4:5], v3, s[44:47], s100 offen offset:{(NST-1)*8}")
        e.label("L_fin")
        vt = 125
        e("s_waitcnt lgkmcnt(0)")
        e("s_mov_b64 exec, -1")
        e(f"s_mul_i32 s100, s2, {NST*8}")
        e(f"s_add_u32 s100, s100, {STAMP}")
        e(f"s_mul_i32 s99, s101, {NSW*8}")
        e("s_add_u32 s99, s99, s100")
        e(f"v_lshlrev_b32 v{vt+2}, 2, v0")
        e(f"v_mov_b32 v{vt}, 0")
        for k in range(NSW):
            if k > 0:
                e(f"s_cmp_eq_u64 s[{80+2*k}:{81+2*k}], 0")
                e(f"s_cselect_b64 s[{80+2*k}:{81+2*k}], s[{78+2*k}:{79+2*k}], s[{80+2*k}:{81+2*k}]")
            e(f"v_writelane_b32 v{vt}, s{80+2*k}, {2*k}")
            e(f"v_writelane_b32 v{vt}, s{81+2*k}, {2*k+1}")
        e(f"s_mov_b64 exec, {(1<<(2*NSW))-1:#x}")
        e(f"buffer_store_dword v{vt}, v{vt+2}, s[44:47], s99 offen")
        e("s_cmp_lt_u32 s73, 160")
        e("s_cbranch_scc1 L_end")
        e("s_cmp_lg_u32 s101, 4")
        e("s_cbranch_scc1 L_end")
        e(f"s_mov_b64 exec, {3<<(2*NSW-2):#x}")
        e(f"buffer_store_dword v{vt}, v{vt+2}, s[44:47], s100 offen offset:{(NST-1)*8-(2*NSW-2)*4}")
    e.label("L_end")
    e("s_endpgm")
    e.label(L2)
    e(f"ds_read_b64 v[10:11], v{CA+1} offset:{L_BV}")
    e(f"s_branch {L}")
    for (R_, L, D, sl, thr, hk) in stubs:
        e.label(R_)
        if sl: e(f"s_sleep {sl}")
        if hk:
            K = e.newlabel('HK')
            e(f"s_cmp_lg_u32 s42, {thr}")
            e(f"s_cbranch_scc1 {K}")
            e("s_cmp_eq_u32 s54, 0")
            e(f"s_cbranch_scc1 {K}")
            e(f"buffer_store_dwordx4 v[{PG}:{PG+3}], v{PG+4}, s[44:47], s55 offen sc1")
            e("s_mov_b32 s54, 0")
            e.label(K)
        e("s_sub_u32 s42, s42, 1")
        e(f"s_cbranch_scc0 {L}")
        e(f"s_branch {D}")
    e.raw('.section .rodata,"a"')
    e.raw(".p2align 6")
    e.raw(f".amdhsa_kernel {NAME}")
    e.raw("  .amdhsa_next_free_vgpr 128")
    e.raw("  .amdhsa_next_free_sgpr 102")
    e.raw("  .amdhsa_accum_offset 128")
    e.raw("  .amdhsa_group_segment_fixed_size 0")
    e.raw("  .amdhsa_kernarg_size 104")
    e.raw("  .amdhsa_user_sgpr_count 2")
    e.raw("  .amdhsa_user_sgpr_kernarg_segment_ptr 1")
    e.raw("  .amdhsa_system_sgpr_workgroup_id_x 1")
    e.raw("  .amdhsa_float_denorm_mode_32 3")
    e.raw(".end_amdhsa_kernel")
    return e.text()

if __name__ == "__main__":
    from build import build
    kw = {}
    out = "k"
    for a in sys.argv[1:]:
        k, v = a.split('=')
        if k == 'out': out = v
        else: kw[k] = int(v)
    open(out + ".s", "w").write(gen(**kw))
    build(out + ".s", out + ".co")
```
